```python
import torch

def _softmax(x, axis=-1):
    return torch.softmax(x, dim=axis)
def _gelu(x):
    return torch.nn.functional.gelu(x, approximate="tanh")
def _silu(x):
    return torch.nn.functional.silu(x)
def _sigmoid(x):
    return torch.sigmoid(x)
def _layernorm(x, axis=-1, eps=1e-5):
    m = x.mean(dim=axis, keepdim=True)
    v = x.var(dim=axis, keepdim=True, unbiased=False)
    return (x - m) / torch.sqrt(v + eps)
def _scatter_add(tgt, idx, src, axis=0):
    return tgt.clone().index_add_(axis, idx, src)
def _segment_sum(src, seg, n):
    out = torch.zeros((n,) + src.shape[1:], dtype=src.dtype)
    return out.index_add_(0, seg, src)
def _pad(x, pw):
    flat = tuple(v for pair in reversed(pw) for v in pair)
    return torch.nn.functional.pad(x, flat)

kernel_name = 'interleave_layers__compressed_kv_cla__dense_activation_gelu__decode'

def setup_inputs():

    _w = (lambda a: (lambda t: t.to(torch.bfloat16) if t.is_floating_point() else t)(torch.as_tensor(a)))
    def _A_setup():
        B, H, Sq, Sk, D, M = 1, 32, 1, 4096, 128, 640
        Dc = 4 * D
        return {
            "x": _w((lambda *s: torch.randn(*s, dtype=torch.bfloat16) * 0.05)(B, Sq, M)),
            "c_kv": _w((lambda *s: torch.randn(*s, dtype=torch.bfloat16) * 1.6)(B, Sk, Dc)),
            "w_q": _w((lambda *s: torch.randn(*s, dtype=torch.bfloat16) * 0.8)(M, H, D) * (M ** -0.5)),
            "w_uk": _w((lambda *s: torch.randn(*s, dtype=torch.bfloat16) * 0.8)(Dc, H, D) * (Dc ** -0.5)),
            "w_uv": _w((lambda *s: torch.randn(*s, dtype=torch.bfloat16) * 1.6)(Dc, H, D) * (Dc ** -0.5)),
            "w_o": _w((lambda *s: torch.randn(*s, dtype=torch.bfloat16) * 1.6)(H, D, M) * ((H * D) ** -0.5)),
        }
    _A_in = _A_setup()

    def _B_setup():
        B, S, D, F = 1, 1, 640, 1728
        return {
            "x": _w((lambda *s: torch.randn(*s, dtype=torch.bfloat16) * 0.05)(B, S, D)),
            "w1": _w((lambda *s: torch.randn(*s, dtype=torch.bfloat16) * 0.4)(D, F) * (D ** -0.5)),
            "b1": _w((lambda *s: torch.randn(*s, dtype=torch.bfloat16) * 0.4)(F) * 0.01),
            "w2": _w((lambda *s: torch.randn(*s, dtype=torch.bfloat16) * 0.4)(F, D) * (F ** -0.5)),
            "b2": _w((lambda *s: torch.randn(*s, dtype=torch.bfloat16) * 0.4)(D) * 0.01),
        }
    _B_in = _B_setup()

    return {
        "A_x": _A_in["x"],
        "A_c_kv": _A_in["c_kv"],
        "A_w_q": _A_in["w_q"],
        "A_w_uk": _A_in["w_uk"],
        "A_w_uv": _A_in["w_uv"],
        "A_w_o": _A_in["w_o"],
        "B_x": _B_in["x"],
        "B_w1": _B_in["w1"],
        "B_b1": _B_in["b1"],
        "B_w2": _B_in["w2"],
        "B_b2": _B_in["b2"],
    }

def reference(A_x, A_c_kv, A_w_q, A_w_uk, A_w_uv, A_w_o, B_x, B_w1, B_b1, B_w2, B_b2):
    def _A_ref(x, c_kv, w_q, w_uk, w_uv, w_o):
        B, Sq, M = x.shape[0], x.shape[1], x.shape[2]
        Sk = c_kv.shape[1]
        H, D = w_q.shape[1], w_q.shape[2]
        q = torch.einsum("bqm,mhd->bhqd", x, w_q)
        k = torch.einsum("bkc,chd->bhkd", c_kv, w_uk)
        v = torch.einsum("bkc,chd->bhkd", c_kv, w_uv)
        scores = torch.einsum("bhqd,bhkd->bhqk", q, k) * (D ** -0.5)
        off = Sk - Sq
        qi = torch.arange(Sq)[:, None]
        kj = torch.arange(Sk)[None, :]
        cmask = kj <= (qi + off)
        scores = torch.where(cmask[None, None], scores, -1e9)
        p = _softmax(scores, axis=-1)
        ctx = torch.einsum("bhqk,bhkd->bhqd", p, v)
        return torch.einsum("bhqd,hdm->bqm", ctx, w_o)

    def _B_ref(x, w1, b1, w2, b2):
        h = torch.einsum("bsd,df->bsf", x, w1) + b1
        h = _gelu(h)
        return torch.einsum("bsf,fd->bsd", h, w2) + b2

    x = A_x
    x = x + _A_ref(_layernorm(x, axis=-1), A_c_kv, A_w_q, A_w_uk, A_w_uv, A_w_o)
    x = x + _B_ref(_layernorm(x, axis=-1), B_w1, B_b1, B_w2, B_b2)
    x = x + _A_ref(_layernorm(x, axis=-1), A_c_kv, A_w_q, A_w_uk, A_w_uv, A_w_o)
    x = x + _B_ref(_layernorm(x, axis=-1), B_w1, B_b1, B_w2, B_b2)
    return x
```

```python
import sys, struct
sys.path.insert(0,'bench'); sys.path.insert(0, "cdna_kernels")
from build import build
import numpy as np
body = r"""
s_load_dwordx4 s[4:7], s[0:1], 0
s_waitcnt lgkmcnt(0)
s_mov_b32 s8, s4
s_mov_b32 s9, s5
s_mov_b32 s10, 0x10000
s_mov_b32 s11, 0x20000
s_mov_b32 s12, s6
s_mov_b32 s13, s7
s_mov_b32 s14, 0x10000
s_mov_b32 s15, 0x20000
v_lshlrev_b32 v1, 4, v0        ; lane*16
v_lshlrev_b32 v2, 2, v0        ; lane*4
s_mov_b32 m0, 4096
s_nop 0
buffer_load_dwordx4 v1, s[8:11], 0 offen lds
buffer_load_dwordx4 v1, s[8:11], 0 offen offset:1024 lds
s_waitcnt vmcnt(0)
v_lshlrev_b32 v3, 3, v0
ds_read_b64_tr_b16 v[4:5], v3 offset:4096
ds_read_b128 v[8:11], v1 offset:5120
s_waitcnt lgkmcnt(0)
buffer_store_dword v4, v2, s[12:15], 0 offen
buffer_store_dword v5, v2, s[12:15], 0 offen offset:256
buffer_store_dword v8, v2, s[12:15], 0 offen offset:512
v_mov_b32 v12, v0
s_nop 1
v_mov_b32_dpp v13, v12 row_newbcast:11 row_mask:0xf bank_mask:0xf
buffer_store_dword v13, v2, s[12:15], 0 offen offset:768
v_mov_b32 v14, 1000
s_nop 1
v_add_u32_dpp v14, v12, v12 row_shr:5 row_mask:0xf bank_mask:0xf
buffer_store_dword v14, v2, s[12:15], 0 offen offset:1024
v_mov_b32 v15, 1000
s_nop 1
v_mov_b32_dpp v15, v12 row_shl:2 row_mask:0xf bank_mask:0xf
buffer_store_dword v15, v2, s[12:15], 0 offen offset:1280
v_mov_b32 v16, v0
v_add_u32 v17, 100, v0
s_nop 1
v_permlane16_swap_b32 v16, v17
buffer_store_dword v16, v2, s[12:15], 0 offen offset:1536
buffer_store_dword v17, v2, s[12:15], 0 offen offset:1792
v_mov_b32 v16, v0
v_add_u32 v17, 100, v0
s_nop 1
v_permlane32_swap_b32 v16, v17
buffer_store_dword v16, v2, s[12:15], 0 offen offset:2048
buffer_store_dword v17, v2, s[12:15], 0 offen offset:2304
v_mov_b32 v18, 1.0
v_mov_b32 v19, 2.0
v_cvt_pk_bf16_f32 v20, v18, v19
buffer_store_dword v20, v2, s[12:15], 0 offen offset:2560
v_mov_b32 v21, 1000
s_nop 1
v_mov_b32_dpp v21, v12 quad_perm:[1,0,3,2] row_mask:0xf bank_mask:0xf
buffer_store_dword v21, v2, s[12:15], 0 offen offset:2816
v_mov_b32 v22, 1000
s_nop 1
v_add_u32_dpp v22, v12, v12 row_shr:5 row_mask:0xf bank_mask:0xf bound_ctrl:0
buffer_store_dword v22, v2, s[12:15], 0 offen offset:3072
v_mov_b32 v23, 0xffffffff
v_mov_b32 v24, 0xffff0000
v_cvt_pk_bf16_f32 v25, v23, v24
buffer_store_dword v25, v2, s[12:15], 0 offen offset:3328
s_mov_b32 s20, 0x07060302
v_mov_b32 v26, 0x11223344
v_mov_b32 v27, 0x55667788
v_perm_b32 v28, v27, v26, s20
buffer_store_dword v28, v2, s[12:15], 0 offen offset:3584
v_mov_b32 v29, 1000
s_nop 1
v_mov_b32_dpp v29, v12 row_ror:4 row_mask:0xf bank_mask:0xf
buffer_store_dword v29, v2, s[12:15], 0 offen offset:3840
s_waitcnt vmcnt(0)
"""
name="pr_kernel"
asm = f"""; @launch grid=(1,1,1) block=(64,1,1) lds=16384
.amdgcn_target "amdgcn-amd-amdhsa--gfx950"
.text
.globl {name}
.p2align 8
.type {name},@function
{name}:
{body}
s_endpgm
.section .rodata,"a"
.p2align 6
.amdhsa_kernel {name}
.amdhsa_next_free_vgpr 64
.amdhsa_next_free_sgpr 64
.amdhsa_accum_offset 64
.amdhsa_group_segment_fixed_size 0
.amdhsa_kernarg_size 32
.amdhsa_user_sgpr_count 2
.amdhsa_user_sgpr_kernarg_segment_ptr 1
.amdhsa_system_sgpr_workgroup_id_x 1
.end_amdhsa_kernel
"""
build(asm, "pr.co", name, 4)
import os
if os.path.exists('/dev/kfd'):
    import cdna_launch as cl
    src = np.arange(32768, dtype=np.uint16)
    b = cl.DeviceBuffer.from_numpy(src); out = cl.DeviceBuffer(1<<16)
    k = cl.AsmKernel("pr.co", name)
    k.launch((1,1,1),(64,1,1), struct.pack("<4Q", b.ptr, out.ptr, 0, 0), 16384)
    cl._check(cl._hip.hipDeviceSynchronize())
    h = out.to_numpy(np.uint32, (16,64))
    print("tr lo:", [(int(x&0xffff), int(x>>16)) for x in h[0]])
    print("tr hi:", [(int(x&0xffff), int(x>>16)) for x in h[1]])
    print("b128 :", [(int(x&0xffff)) for x in h[2]][:8])
    for i,n in [(3,'newbcast11'),(4,'add shr5'),(5,'shl2'),(6,'pl16 dst'),(7,'pl16 src'),(8,'pl32 dst'),(9,'pl32 src'),(11,'qp1032'),(12,'shr5 bc0'),(15,'ror4')]:
        print(n, h[i].tolist())
    print("cvtpk", hex(h[10][0]), "nan", hex(h[13][0]), "perm", hex(h[14][0]))
```
